```python
import torch

def _softmax(x, axis=-1):
    return torch.softmax(x, dim=axis)
def _gelu(x):
    return torch.nn.functional.gelu(x, approximate="tanh")
def _silu(x):
    return torch.nn.functional.silu(x)
def _sigmoid(x):
    return torch.sigmoid(x)
def _layernorm(x, axis=-1, eps=1e-5):
    m = x.mean(dim=axis, keepdim=True)
    v = x.var(dim=axis, keepdim=True, unbiased=False)
    return (x - m) / torch.sqrt(v + eps)
def _scatter_add(tgt, idx, src, axis=0):
    return tgt.clone().index_add_(axis, idx, src)
def _segment_sum(src, seg, n):
    out = torch.zeros((n,) + src.shape[1:], dtype=src.dtype)
    return out.index_add_(0, seg, src)
def _pad(x, pw):
    flat = tuple(v for pair in reversed(pw) for v in pair)
    return torch.nn.functional.pad(x, flat)

kernel_name = 'standalone__mha_softmax__sampling'

def setup_inputs():

    _w = (lambda a: (lambda t: t.to(torch.bfloat16) if t.is_floating_point() else t)(torch.as_tensor(a)))
    B, H, Sq, Sk, D = 8, 32, 4, 4096, 192
    return {
        "q": _w((lambda *s: torch.randn(*s, dtype=torch.bfloat16) * 0.8)(B, H, Sq, D)),
        "k": _w((lambda *s: torch.randn(*s, dtype=torch.bfloat16) * 0.8)(B, H, Sk, D)),
        "v": _w((lambda *s: torch.randn(*s, dtype=torch.bfloat16) * 0.05)(B, H, Sk, D)),
    }

def reference(q, k, v):
    scale = q.shape[-1] ** -0.5
    scores = torch.einsum("bhqd,bhkd->bhqk", q, k) * scale
    p = _softmax(scores, axis=-1)
    return torch.einsum("bhqk,bhkd->bhqd", p, v)
```

```python
import math, struct

NAME = "standalone__mha_softmax__sampling_kernel"
KB = 4096 * 192 * 2
STAGE = 24576
RING = 3 * STAGE
S_BASE = RING
MB = S_BASE + 65536
CTRL = MB + 64
LDS_TOTAL = MB + 128

def f32bits(x):
    return struct.unpack("<I", struct.pack("<f", x))[0]

def gen(N=19, rot=21, order="BABABA", flags="nt", stamp=False, ad=False, lo=2, hi=3, T1=50, T2=150, T3=250, CP=12, PERIOD=16, DL=6, DP=8, act=True, lagsh=1, il=False, wlo=0, whi=256, fine=False, G=9, dmax=4, leak=0, dbgout=False):
    L = []
    A = L.append
    def C(s): L.append("    ; " + s)
    scale_l2e = (192 ** -0.5) * math.log2(math.e)
    levels = list(range(N - lo, N + hi + 1)) if ad else [N]
    assert max(levels) <= 24
    mid = levels.index(N)

    A(f"s_cmp_ge_u32 s2, {whi}")
    A("s_cbranch_scc1 L_end")
    if wlo:
        A(f"s_cmp_lt_u32 s2, {wlo}")
        A("s_cbranch_scc1 L_end")
    A("s_load_dwordx4 s[4:7], s[0:1], 8")
    A("s_load_dwordx2 s[36:37], s[0:1], 0")
    A("s_load_dwordx2 s[38:39], s[0:1], 24")
    if stamp:
        A("s_memrealtime s[40:41]")
        A("s_load_dwordx2 s[44:45], s[0:1], 40")
    A("v_lshrrev_b32 v1, 6, v0")
    A("v_and_b32 v0, 63, v0")
    A(f"s_mul_i32 s9, s2, {KB}")
    A("v_readfirstlane_b32 s3, v1")
    A("s_nop 3")
    if stamp: A("s_mov_b32 s47, s3")
    A("s_cmp_lg_u32 s3, 0")
    A("s_cbranch_scc1 L_cons")

    C("loader wave: streams K then V through a 3-stage LDS ring with LDS-DMA, a bounded number of loads in flight")
    C("tile = 16 keys = 8 keys at A and 8 keys at A + 168 keys (about 64 KiB away); tile order rotated per workgroup")
    A("s_setprio 3")
    A("v_lshlrev_b32 v1, 4, v0")
    A(f"s_mul_i32 s21, s2, {rot}")
    A("s_and_b32 s21, s21, 255")
    A("s_movk_i32 s33, 256")
    A("s_mov_b32 s27, 0")
    A("s_mov_b32 s23, -4")
    def newrun():
        A("s_and_b32 s30, s21, 63")
        A("s_lshr_b32 s31, s21, 6")
        A("s_mul_i32 s31, s31, 393216")
        A("s_mul_i32 s20, s30, 3072")
        A("s_movk_i32 s32, 21")
        A("s_cmp_ge_u32 s30, 21")
        A(f"s_cselect_b32 s34, {176*384}, 0")
        A("s_cselect_b32 s32, 42, s32")
        A("s_add_u32 s20, s20, s34")
        A("s_cmp_ge_u32 s30, 42")
        A(f"s_cselect_b32 s34, {176*384}, 0")
        A("s_cselect_b32 s32, 63, s32")
        A("s_add_u32 s20, s20, s34")
        A(f"s_mov_b32 s34, {168*384}")
        A("s_cmp_eq_u32 s30, 63")
        A(f"s_cselect_b32 s20, {336*384}, s20")
        A(f"s_cselect_b32 s34, {344*384}, s34")
        A("s_cselect_b32 s32, 64, s32")
        A("s_add_u32 s20, s20, s31")
        A("s_sub_u32 s32, s32, s30")
        A("s_min_u32 s32, s32, s33")
        A("v_add_u32 v2, s34, v1")
        A("s_sub_u32 s33, s33, s32")
        A("s_add_u32 s21, s21, s32")
        A("s_and_b32 s21, s21, 255")
        A("s_sub_u32 s29, 0, s32")
    if il: A("s_add_u32 s35, s21, 1")
    newrun()
    if il: A("s_mov_b32 s21, s35")
    if ad:
        A(f"v_mov_b32 v5, {CTRL}")
        A(f"v_mov_b32 v4, {4*mid if fine else mid}")
        A("ds_write_b32 v5, v4")
    A("s_waitcnt lgkmcnt(0)")
    A("s_add_u32 s12, s4, s9")
    A("s_addc_u32 s13, s5, 0")
    A(f"s_mov_b32 s14, {KB}")
    A("s_mov_b32 s15, 0x20000")
    def tile_body(label, NN):
        p = (NN - 1) % 24
        bt, bl = p // 6, p % 6
        A(f"{label}:")
        cnt = {"A": 0, "B": 0}
        for t in range(6):
            s_ = order[t]; k = cnt[s_]; cnt[s_] += 1
            slot = (0 if s_ == "A" else 3) + k
            if slot*1024 - k*1024 == 0: A("s_mov_b32 m0, s27")
            else: A(f"s_add_u32 m0, s27, {slot*1024 - k*1024}")
            A(f"s_waitcnt vmcnt({NN-1})")
            A(f"buffer_load_dwordx4 {'v1' if s_ == 'A' else 'v2'}, s[12:15], s20 offen offset:{k*1024} {flags} lds")
            if t == bl:
                A("s_and_b32 s28, s23, 0x80000003")
                A(f"s_cmp_lg_u32 s28, {bt}")
                A(f"s_cbranch_scc1 {label}_nb")
                A("s_barrier")
                A(f"{label}_nb:")
            if t == 2:
                A("s_add_u32 s22, s27, 6144")
                A(f"s_cmp_ge_u32 s22, {RING}")
                A("s_cselect_b32 s22, 0, s22")
        A("s_add_u32 s20, s20, 3072")
        A("s_mov_b32 s27, s22")
        A("s_add_u32 s29, s29, 1")
        A(f"s_cbranch_scc1 {label}_rare")
        A(f"{label}_ret:")
        A("s_add_u32 s23, s23, 1")
    if il:
        assert not ad
        p = (N - 1) % 24
        bt, bl = p // 6, p % 6
        nxt = ["s_and_b32 s30, s21, 63", "s_bfe_u32 s31, s21, 0x20006", "s_mul_i32 s31, s31, 393216", "s_mul_i32 s35, s30, 3072",
               "s_cmp_ge_u32 s30, 21", f"s_cselect_b32 s34, {176*384}, 0", "s_add_u32 s35, s35, s34",
               "s_cmp_ge_u32 s30, 42", f"s_cselect_b32 s34, {176*384}, 0", "s_add_u32 s35, s35, s34",
               "s_cmp_eq_u32 s30, 63", f"s_cselect_b32 s35, {336*384}, s35", f"s_cselect_b32 s34, s36, s37",
               "s_add_u32 s35, s35, s31", "s_add_u32 s21, s21, 1",
               "s_add_u32 s22, s27, 6144", f"s_cmp_ge_u32 s22, {RING}", "s_cselect_b32 s22, 0, s22"]
        groups = [nxt[0:4], nxt[4:7], nxt[7:10], nxt[10:13], nxt[13:18], []]
        A(f"s_mov_b32 s36, {344*384}"); A(f"s_mov_b32 s37, {168*384}")
        A("L_ld:")
        cnt = {"A": 0, "B": 0}
        for t in range(6):
            s_ = order[t]; k = cnt[s_]; cnt[s_] += 1
            slot = (0 if s_ == "A" else 3) + k
            if slot*1024 - k*1024 == 0: A("s_mov_b32 m0, s27")
            else: A(f"s_add_u32 m0, s27, {slot*1024 - k*1024}")
            A(f"s_waitcnt vmcnt({N-1})")
            A(f"buffer_load_dwordx4 {'v1' if s_ == 'A' else 'v2'}, s[12:15], s20 offen offset:{k*1024} {flags} lds")
            if t == bl:
                A("s_and_b32 s28, s23, 0x80000003")
                A(f"s_cmp_lg_u32 s28, {bt}")
                A("s_cbranch_scc1 L_ld_nb")
                A("s_barrier")
                A("L_ld_nb:")
            for x in groups[t]: A(x)
        A("s_mov_b32 s20, s35")
        A("v_add_u32 v2, s34, v1")
        A("s_mov_b32 s27, s22")
        A("s_add_u32 s23, s23, 1")
        A("s_cmp_lg_u32 s23, 252")
        A("s_cbranch_scc1 L_ld_ns")
        A("s_add_u32 s12, s6, s9")
        A("s_addc_u32 s13, s7, 0")
        A("L_ld_ns:")
        A("s_cmp_lg_u32 s23, 508")
        A("s_cbranch_scc1 L_ld")
    elif not ad:
        tile_body("L_ld", N)
        A("s_cmp_lg_u32 s23, 508")
        A("s_cbranch_scc1 L_ld")
    else:
        A("L_stage:")
        A("s_waitcnt lgkmcnt(0)")
        A("v_readfirstlane_b32 s37, v4")
        A("ds_read_b32 v4, v5")
        if fine:
            A("s_add_u32 s28, s23, 4")
            A("s_bfe_u32 s28, s28, 0x20002")
            A("s_add_u32 s37, s37, s28")
            A("s_lshr_b32 s37, s37, 2")
        else:
            A("s_nop 1")
        orderl = [mid] + [i for i in range(len(levels)) if i != mid]
        for li in orderl[1:]:
            A(f"s_cmp_eq_u32 s37, {li}"); A(f"s_cbranch_scc1 L_v{li}")
        for idx, li in enumerate(orderl):
            tile_body(f"L_v{li}", levels[li])
            A("s_and_b32 s28, s23, 3")
            A(f"s_cbranch_scc1 L_v{li}")
            if idx != len(orderl) - 1: A("s_branch L_next")
        A("L_next:")
        A("s_cmp_lg_u32 s23, 508")
        A("s_cbranch_scc1 L_stage")
    A("s_waitcnt vmcnt(0)")
    A("s_barrier")
    if stamp: A("s_branch L_stamp")
    else: A("s_endpgm")
    def rare_common():
        A("s_cmp_lg_u32 s33, 0")
        A("s_cbranch_scc1 L_rare2")
        A("s_add_u32 s12, s6, s9")
        A("s_addc_u32 s13, s7, 0")
        A("s_movk_i32 s33, 256")
        A("L_rare2:")
        newrun()
    if il:
        pass
    elif not ad:
        A("L_ld_rare:")
        rare_common()
        A("s_branch L_ld_ret")
    else:
        for li in range(len(levels)):
            A(f"L_v{li}_rare:")
            A("s_call_b64 s[68:69], L_rare")
            A(f"s_branch L_v{li}_ret")
        A("L_rare:")
        rare_common()
        A("s_setpc_b64 s[68:69]")

    A("L_cons:")
    C("consumer waves 1..4 -> w = 0..3. K phase: wave w scores tile w of each stage; V phase: wave w owns d columns 48w..48w+47")
    Q, F, ACC, SC, PP = 8, 32, 56, 68, 84
    vM, vL, vMC = 92, 93, 94
    vKb, vVb, vSw, vSr, vA = 95, 96, 97, 98, 99
    T = 100
    vOut = 104
    A("s_sub_u32 s3, s3, 1")
    A("v_lshrrev_b32 v2, 4, v0")
    A("v_and_b32 v3, 15, v0")
    A("v_and_b32 v4, 3, v0")
    A("s_mul_i32 s10, s2, 1536")
    A("v_mul_u32_u24 v5, 384, v4")
    A("v_lshl_add_u32 v5, v2, 4, v5")
    if ad:
        A("s_load_dwordx2 s[42:43], s[0:1], 32")
    A("s_waitcnt lgkmcnt(0)")
    A("s_add_u32 s12, s36, s10")
    A("s_addc_u32 s13, s37, 0")
    A("s_mov_b32 s14, 1536")
    A("s_mov_b32 s15, 0x20000")
    for jj in range(6):
        A(f"buffer_load_dwordx4 v[{Q+4*jj}:{Q+4*jj+3}], v5, s[12:15], 0 offen offset:{jj*64}")
    A("s_add_u32 s16, s38, s10")
    A("s_addc_u32 s17, s39, 0")
    A("s_mov_b32 s18, 1536")
    A("s_mov_b32 s19, 0x20000")
    A("s_mul_i32 s20, s3, 6144")
    A(f"v_mul_u32_u24 v{vKb}, 384, v3")
    A(f"v_lshl_add_u32 v{vKb}, v2, 4, v{vKb}")
    A(f"v_add_u32 v{vKb}, s20, v{vKb}")
    A("s_mul_i32 s20, s3, 96")
    A("v_lshrrev_b32 v6, 2, v0")
    A(f"v_mul_u32_u24 v{vVb}, 384, v6")
    A(f"v_lshl_add_u32 v{vVb}, v4, 3, v{vVb}")
    A(f"v_add_u32 v{vVb}, s20, v{vVb}")
    A(f"v_lshlrev_b32 v{vSr}, 6, v4")
    A(f"v_lshl_add_u32 v{vSr}, v2, 4, v{vSr}")
    A(f"v_add_u32 v{vSr}, {S_BASE}, v{vSr}")
    A("s_lshl_b32 s21, s3, 8")
    A(f"v_add_u32 v{vSw}, s21, v{vSr}")
    A(f"v_mul_u32_u24 v{vOut}, 384, v4")
    A(f"v_lshl_add_u32 v{vOut}, v2, 3, v{vOut}")
    A(f"v_add_u32 v{vOut}, s20, v{vOut}")
    A(f"v_mov_b32 v{vM}, 0xff800000")
    A(f"v_mov_b32 v{vL}, 0")
    for r in range(12): A(f"v_mov_b32 v{ACC+r}, 0")
    A("s_mov_b32 s27, 0")
    A("s_mov_b32 s22, 64")
    A("s_mov_b32 s24, 0x000f000f")
    A("s_mov_b32 s25, 0x000f000f")
    A(f"s_mov_b32 s26, {f32bits(scale_l2e):#x}")
    if ad:
        A("s_mov_b32 s29, 0")
        A(f"s_mov_b32 s30, {4*mid if fine else mid}")
        A("s_mov_b32 s31, 0")
        A("s_mov_b32 s48, 0")
        A("s_bfe_u32 s32, s2, 0x30003"); A("s_and_b32 s33, s2, 7")
        A("s_cmp_eq_u32 s32, s33"); A("s_cselect_b32 s49, 1, 0")
        A(f"v_mov_b32 v123, {CTRL}")
        A("v_mov_b32 v121, 0")
    def ctrl(lb):
        if not ad: return
        pm = PERIOD - 1
        A("s_cmp_lg_u32 s3, 0"); A(f"s_cbranch_scc1 {lb}_cx")
        A(f"s_and_b32 s28, s29, {pm}")
        A(f"s_cmp_lg_u32 s28, {CP}"); A(f"s_cbranch_scc1 {lb}_c1")
        A("s_memrealtime s[50:51]")
        A(f"s_lshr_b32 s34, s29, {PERIOD.bit_length()-1}")
        A("s_lshl_b32 s34, s34, 2")
        A("v_mov_b32 v121, s34")
        A("s_waitcnt lgkmcnt(0)")
        A("s_mov_b32 s48, s50")
        A("s_cmp_eq_u32 s49, 0"); A(f"s_cbranch_scc1 {lb}_cx")
        A("s_lshl_b32 s34, s50, 6"); A("s_or_b32 s34, s34, 1")
        A("v_mov_b32 v122, s34")
        A("s_mov_b64 exec, 1")
        A("global_atomic_add v121, v122, s[42:43]")
        A("s_mov_b64 exec, -1")
        A(f"s_branch {lb}_cx")
        A(f"{lb}_c1:")
        A(f"s_cmp_lt_u32 s29, {CP}"); A(f"s_cbranch_scc1 {lb}_cx")
        A(f"s_cmp_lg_u32 s28, {(CP+DL) & pm}"); A(f"s_cbranch_scc1 {lb}_c2")
        A("s_mov_b64 exec, 1")
        A("global_load_dword v120, v121, s[42:43] sc0 sc1")
        A("s_mov_b64 exec, -1")
        A(f"s_branch {lb}_cx")
        A(f"{lb}_c2:")
        A(f"s_cmp_lg_u32 s28, {(CP+DP) & pm}"); A(f"s_cbranch_scc1 {lb}_cx")
        A(f"s_cmp_lt_u32 s29, {CP+DP}"); A(f"s_cbranch_scc1 {lb}_cx")
        A("s_waitcnt vmcnt(0)")
        A("v_readfirstlane_b32 s34, v120")
        A("s_nop 1")
        A("s_and_b32 s35, s34, 63")
        A("s_lshr_b32 s34, s34, 6")
        A("s_cmp_lt_u32 s35, 28"); A(f"s_cbranch_scc1 {lb}_cx")
        A("s_mul_i32 s35, s35, s48")
        A("s_sub_u32 s34, s35, s34")
        A("s_lshl_b32 s34, s34, 6")
        A("s_ashr_i32 s34, s34, 11")
        A("s_sub_i32 s35, s34, s31")
        A("s_mov_b32 s31, s34")
        A(f"s_ashr_i32 s34, s34, {lagsh}")
        A("s_add_i32 s34, s34, s35")
        if act and fine:
            A(f"s_mul_i32 s34, s34, {G}")
            A("s_add_i32 s34, s34, 128")
            A("s_ashr_i32 s34, s34, 8")
            A(f"s_max_i32 s34, s34, {-dmax}")
            A(f"s_min_i32 s34, s34, {dmax}")
            A("s_add_i32 s30, s30, s34")
            if leak:
                A(f"s_sub_i32 s34, s30, {4*mid}"); A(f"s_add_i32 s34, s34, {1 << (leak-1)}"); A(f"s_ashr_i32 s34, s34, {leak}"); A("s_sub_i32 s30, s30, s34")
            A("s_max_i32 s30, s30, 0")
            A(f"s_min_i32 s30, s30, {4*(len(levels)-1)}")
            A("v_mov_b32 v122, s30")
            A("ds_write_b32 v123, v122")
        elif act:
            for t in (T1, T2, T3):
                A(f"s_cmp_gt_i32 s34, {t}"); A("s_addc_u32 s30, s30, 0")
            for t in (T1, T2, T3):
                A(f"s_cmp_lt_i32 s34, {-t}"); A("s_subb_u32 s30, s30, 0")
            A("s_max_i32 s30, s30, 0")
            A(f"s_min_i32 s30, s30, {len(levels)-1}")
            A("v_mov_b32 v122, s30")
            A("ds_write_b32 v123, v122")
        A(f"{lb}_cx:")
        A("s_add_u32 s29, s29, 1")
    A("s_waitcnt vmcnt(0)")
    A("L_kc:")
    ctrl("L_kc")
    A("s_barrier")
    A(f"v_add_u32 v{vA}, s27, v{vKb}")
    for jj in range(6):
        A(f"ds_read_b128 v[{F+4*jj}:{F+4*jj+3}], v{vA} offset:{jj*64}")
    A(f"s_add_u32 s27, s27, {STAGE}")
    A(f"s_cmp_ge_u32 s27, {RING}")
    A("s_cselect_b32 s27, 0, s27")
    for jj in range(6):
        A(f"s_waitcnt lgkmcnt({5-jj})")
        c = "0" if jj == 0 else f"v[{SC}:{SC+3}]"
        A(f"v_mfma_f32_16x16x32_bf16 v[{SC}:{SC+3}], v[{F+4*jj}:{F+4*jj+3}], v[{Q+4*jj}:{Q+4*jj+3}], {c}")
    A("s_sub_u32 s22, s22, 1")
    A("s_nop 7")
    A("s_mov_b64 exec, s[24:25]")
    A(f"ds_write_b128 v{vSw}, v[{SC}:{SC+3}]")
    A("s_mov_b64 exec, -1")
    A(f"v_max3_f32 v{vM}, v{SC}, v{SC+1}, v{vM}")
    A(f"v_max3_f32 v{vM}, v{SC+2}, v{SC+3}, v{vM}")
    A(f"v_add_u32 v{vSw}, 0x400, v{vSw}")
    A("s_cmp_lg_u32 s22, 0")
    A("s_cbranch_scc1 L_kc")
    def rowreduce(v, op):
        A(f"v_mov_b32 v{T}, v{v}")
        A("s_nop 1")
        A(f"v_permlane32_swap_b32 v{v}, v{T}")
        A("s_nop 1")
        A(f"{op} v{v}, v{v}, v{T}")
        A(f"v_mov_b32 v{T}, v{v}")
        A("s_nop 1")
        A(f"v_permlane16_swap_b32 v{v}, v{T}")
        A("s_nop 1")
        A(f"{op} v{v}, v{v}, v{T}")
    rowreduce(vM, "v_max_f32")
    A(f"v_lshlrev_b32 v{T+1}, 4, v4")
    A(f"v_add_u32 v{T+1}, {MB}, v{T+1}")
    A("s_lshl_b32 s20, s3, 2")
    A(f"v_add_u32 v{T+2}, s20, v{T+1}")
    A(f"ds_write_b32 v{T+2}, v{vM}")
    def computeP():
        for r in range(16): A(f"v_fma_f32 v{SC+r}, v{SC+r}, s26, -v{vMC}")
        for r in range(16): A(f"v_exp_f32 v{SC+r}, v{SC+r}")
        A("s_nop 0")
        for r in range(8): A(f"v_cvt_pk_bf16_f32 v{PP+r}, v{SC+2*r}, v{SC+2*r+1}")
        for r in range(8): A(f"v_add_f32 v{SC+2*r}, v{SC+2*r}, v{SC+2*r+1}")
        for r in range(4): A(f"v_add_f32 v{SC+4*r}, v{SC+4*r}, v{SC+4*r+2}")
        A(f"v_add_f32 v{SC}, v{SC}, v{SC+4}")
        A(f"v_add_f32 v{SC+8}, v{SC+8}, v{SC+12}")
        A(f"v_add_f32 v{vL}, v{vL}, v{SC}")
        A(f"v_add_f32 v{vL}, v{vL}, v{SC+8}")
    def readS():
        for t in range(4):
            A(f"ds_read_b128 v[{SC+4*t}:{SC+4*t+3}], v{vSr} offset:{t*256}")
        A(f"v_add_u32 v{vSr}, 0x400, v{vSr}")
    A("s_mov_b32 s22, 64")
    if ad: A("s_add_u32 s29, s29, 1")
    A("s_waitcnt lgkmcnt(0)")
    A("s_barrier")
    A(f"ds_read_b128 v[{T}:{T+3}], v{T+1}")
    readS()
    A("s_waitcnt lgkmcnt(4)")
    A(f"v_max3_f32 v{vM}, v{T}, v{T+1}, v{T+2}")
    A(f"v_max_f32 v{vM}, v{vM}, v{T+3}")
    A(f"v_mul_f32 v{vMC}, s26, v{vM}")
    A("s_waitcnt lgkmcnt(0)")
    computeP()
    A("s_branch L_v1st")
    A("L_vc:")
    ctrl("L_vc")
    A("s_barrier")
    A("L_v1st:")
    A(f"v_add_u32 v{vA}, s27, v{vVb}")
    for ks in range(2):
        for n in range(3):
            for h in range(2):
                r = F + 4*(ks*3+n) + 2*h
                A(f"ds_read_b64_tr_b16 v[{r}:{r+1}], v{vA} offset:{(2*ks+h)*6144 + n*32}")
    A(f"s_add_u32 s27, s27, {STAGE}")
    A(f"s_cmp_ge_u32 s27, {RING}")
    A("s_cselect_b32 s27, 0, s27")
    A("s_sub_u32 s22, s22, 1")
    idx = 0
    for ks in range(2):
        for n in range(3):
            idx += 2
            A(f"s_waitcnt lgkmcnt({12-idx})")
            r = F + 4*(ks*3+n)
            A(f"v_mfma_f32_16x16x32_bf16 v[{ACC+4*n}:{ACC+4*n+3}], v[{r}:{r+3}], v[{PP+4*ks}:{PP+4*ks+3}], v[{ACC+4*n}:{ACC+4*n+3}]")
    A("s_cmp_eq_u32 s22, 0")
    A("s_cbranch_scc1 L_vdone")
    readS()
    A("s_waitcnt lgkmcnt(0)")
    computeP()
    A("s_branch L_vc")
    A("L_vdone:")
    rowreduce(vL, "v_add_f32")
    A(f"v_rcp_f32 v{vL}, v{vL}")
    A("s_mov_b64 exec, s[24:25]")
    for r in range(12): A(f"v_mul_f32 v{ACC+r}, v{ACC+r}, v{vL}")
    for n in range(3):
        A(f"v_cvt_pk_bf16_f32 v{F+2*n}, v{ACC+4*n}, v{ACC+4*n+1}")
        A(f"v_cvt_pk_bf16_f32 v{F+2*n+1}, v{ACC+4*n+2}, v{ACC+4*n+3}")
    for n in range(3):
        A(f"buffer_store_dwordx2 v[{F+2*n}:{F+2*n+1}], v{vOut}, s[16:19], 0 offen offset:{n*32}")
    A("s_mov_b64 exec, -1")
    if stamp:
        A("L_stamp:")
        A("s_waitcnt vmcnt(0)")
        A("s_memrealtime s[42:43]")
        A("s_getreg_b32 s46, hwreg(HW_REG_XCC_ID)")
        A("s_mul_i32 s48, s2, 5")
        A("s_add_u32 s48, s48, s47")
        A("s_lshl_b32 s48, s48, 4")
        A("s_waitcnt lgkmcnt(0)")
        A("v_mov_b32 v2, s40"); A("v_mov_b32 v3, s42"); A(f"v_mov_b32 v4, {'s30' if dbgout else 's46'}"); A("v_mov_b32 v5, s46"); A("v_mov_b32 v6, s48")
        A("v_cmp_eq_u32 vcc, 0, v0"); A("s_and_saveexec_b64 s[50:51], vcc")
        A("global_store_dwordx4 v6, v[2:5], s[44:45]"); A("s_waitcnt vmcnt(0)")
    A("L_end:")
    A("s_endpgm")

    body = [x if (x.endswith(":") or x.startswith("    ;")) else "    " + x for x in L]
    head = f"""; Kernarg layout for this problem (48 bytes, ptrs only, base s[0:1]):
; @launch grid=(256,1,1) block=(320,1,1) lds={LDS_TOTAL}
.amdgcn_target "amdgcn-amd-amdhsa--gfx950"
.text
.globl {NAME}
.p2align 8
.type {NAME},@function
{NAME}:
"""
    tail = f"""
.section .rodata,"a"
.p2align 6
.amdhsa_kernel {NAME}
  .amdhsa_next_free_vgpr 128
  .amdhsa_next_free_sgpr 72
  .amdhsa_accum_offset 128
  .amdhsa_group_segment_fixed_size 0
  .amdhsa_kernarg_size 48
  .amdhsa_user_sgpr_count 2
  .amdhsa_user_sgpr_kernarg_segment_ptr 1
  .amdhsa_system_sgpr_workgroup_id_x 1
.end_amdhsa_kernel
"""
    return head + "\n".join(body) + tail
```

```python
import sys, json
import gen2 as gen_mha
from build import build
specs=[]; files=[]
for arg in sys.argv[1:]:
    name, _, kv = arg.partition(":")
    kw = {}
    for it in filter(None, kv.split(",")):
        k, v = it.split("=")
        if v in ("True","False"): kw[k] = (v == "True")
        else:
            try: kw[k] = int(v)
            except: kw[k] = v
    src = gen_mha.gen(**kw)
    open(name + ".s", "w").write(src)
    build(name + ".s")
    import re
    m = re.search(r"grid=\((\d+),1,1\) block=\((\d+),1,1\) lds=(\d+)", src)
    specs.append(f"{name}.co@standalone__mha_softmax__sampling_kernel:{m.group(1)}:{m.group(2)}:{m.group(3)}")
    files.append(f"exp/{name}.co")
open("specs.txt","w").write(" ".join(specs))
print(json.dumps(["exp/bench","exp/specs.txt","exp/run_bw.sh"]+files))
```

```python
import math, struct
NAME = "standalone__mha_softmax__sampling_kernel"
KB = 4096 * 192 * 2
STAGE = 24576
RING = 3 * STAGE
S_BASE = RING
MB = S_BASE + 65536
LDS_TOTAL = MB + 128

def f32bits(x): return struct.unpack("<I", struct.pack("<f", x))[0]

def gen(N=19, UP=3, TH=1390, WMIN=171, M0=16, M1=80, rot=21, order="BABABA", flags="nt", stamp=False):
    L = []
    A = L.append
    def C(s): L.append("    ; " + s)
    c_exp2 = (192 ** -0.5) * math.log2(math.e)

    A("s_cmp_ge_u32 s2, 256")
    A("s_cbranch_scc1 L_end")
    A("s_load_dwordx4 s[4:7], s[0:1], 8")
    A("s_load_dwordx2 s[36:37], s[0:1], 0")
    A("s_load_dwordx2 s[38:39], s[0:1], 24")
    if stamp:
        A("s_memrealtime s[60:61]")
        A("s_load_dwordx2 s[44:45], s[0:1], 40")
    A("v_lshrrev_b32 v1, 6, v0")
    A("v_and_b32 v0, 63, v0")
    A(f"s_mul_i32 s9, s2, {KB}")
    A("v_readfirstlane_b32 s3, v1")
    A("s_nop 3")
    if stamp: A("s_mov_b32 s47, s3")
    A("s_cmp_lg_u32 s3, 0")
    A("s_cbranch_scc1 L_cons")

    C("---- loader wave: streams K, then V, into a 3-stage LDS ring with LDS-DMA; at most N loads (1 KiB each) in flight.")
    C("A tile is 16 keys: 8 keys at A (3 KiB) and 8 keys 168 keys further on (about 64 KiB away, which the HBM serves")
    C("faster when both are requested together); 63 such tiles + 1 leftover tile cover 1024 keys. s21 = tile index,")
    C("s20 = byte offset of A, v1 / v2 = lane offsets of A / B, s27 = ring offset, s23 = tiles issued - 4.")
    A("s_setprio 3")
    A("v_lshlrev_b32 v1, 4, v0")
    A(f"s_mul_i32 s21, s2, {rot}")
    A(f"s_mov_b32 s40, {344*384}")
    A(f"s_mov_b32 s41, {168*384}")
    nxt = ["s_and_b32 s30, s21, 63", "s_bfe_u32 s31, s21, 0x20006", "s_mul_i32 s31, s31, 393216", "s_mul_i32 s35, s30, 3072",
           "s_cmp_ge_u32 s30, 21", f"s_cselect_b32 s34, {176*384}, 0", "s_add_u32 s35, s35, s34",
           "s_cmp_ge_u32 s30, 42", f"s_cselect_b32 s34, {176*384}, 0", "s_add_u32 s35, s35, s34",
           "s_cmp_eq_u32 s30, 63", f"s_cselect_b32 s35, {336*384}, s35", "s_cselect_b32 s34, s40, s41",
           "s_add_u32 s35, s35, s31", "s_add_u32 s21, s21, 1"]
    for x in nxt: A(x)
    A("s_mov_b32 s20, s35")
    A("v_add_u32 v2, s34, v1")
    A("s_mov_b32 s27, 0")
    A("s_mov_b32 s23, -4")
    A("s_mov_b32 s42, 0")
    A(f"s_mov_b32 s43, {M0-4}")
    A("s_waitcnt lgkmcnt(0)")
    A("s_add_u32 s12, s4, s9")
    A("s_addc_u32 s13, s5, 0")
    A(f"s_mov_b32 s14, {KB}")
    A("s_mov_b32 s15, 0x20000")
    ring = ["s_add_u32 s22, s27, 6144", f"s_cmp_ge_u32 s22, {RING}", "s_cselect_b32 s22, 0, s22"]
    groups = [nxt[0:4], nxt[4:7], nxt[7:10], nxt[10:13], nxt[13:15] + ring, []]
    def body(lb, NN):
        p = (NN - 1) % 24
        bt, bl = p // 6, p % 6
        A(f"{lb}:")
        cnt = {"A": 0, "B": 0}
        for t in range(6):
            s_ = order[t]; k = cnt[s_]; cnt[s_] += 1
            if s_ == "A": A("s_mov_b32 m0, s27")
            else: A("s_add_u32 m0, s27, 3072")
            A(f"s_waitcnt vmcnt({NN-1})")
            A(f"buffer_load_dwordx4 {'v1' if s_ == 'A' else 'v2'}, s[12:15], s20 offen offset:{k*1024} {flags} lds")
            if t == bl:
                A("s_and_b32 s28, s23, 0x80000003")
                A(f"s_cmp_lg_u32 s28, {bt}")
                A(f"s_cbranch_scc1 {lb}_nb")
                A("s_barrier")
                A(f"{lb}_nb:")
            for x in groups[t]: A(x)
        A("s_mov_b32 s20, s35")
        A("v_add_u32 v2, s34, v1")
        A("s_mov_b32 s27, s22")
        A("s_add_u32 s23, s23, 1")
        A("s_cmp_lg_u32 s23, s43")
        A(f"s_cbranch_scc1 {lb}")
    C("tile loop: the barrier of stage s-1 is passed once its last load has landed (the wait before load N-1 of stage s)")
    body("L_ld", N)
    C("between loop runs (s43 = where to stop next): 1/4 start, 2/5 end of the timed stretch of the K / V phase, 3 switch to V.")
    C("A workgroup of the last third of the buffers that finds its stream slow deepens its window for the rest of the phase.")
    A("L_state:")
    A("s_add_u32 s42, s42, 1")
    A("s_cmp_eq_u32 s42, 6"); A("s_cbranch_scc1 L_done")
    A("s_cmp_eq_u32 s42, 3"); A("s_cbranch_scc0 L_st1")
    A("s_add_u32 s12, s6, s9"); A("s_addc_u32 s13, s7, 0")
    A(f"s_movk_i32 s43, {256 + M0 - 4}"); A("s_branch L_ld")
    A("L_st1:")
    A("s_memrealtime s[50:51]")
    A("s_cmp_eq_u32 s42, 1"); A(f"s_cselect_b32 s43, {M1-4}, 0")
    A("s_cmp_eq_u32 s42, 4"); A(f"s_cselect_b32 s43, {256+M1-4}, s43")
    A("s_waitcnt lgkmcnt(0)")
    A("s_cmp_lg_u32 s43, 0"); A("s_cbranch_scc0 L_st2")
    A("s_mov_b32 s52, s50"); A("s_branch L_ld")
    A("L_st2:")
    A("s_cmp_eq_u32 s42, 2"); A("s_movk_i32 s43, 252"); A("s_cbranch_scc1 L_st3"); A("s_movk_i32 s43, 508")
    A("L_st3:")
    A("s_sub_u32 s50, s50, s52")
    A(f"s_cmp_lt_u32 s50, {TH}"); A("s_cbranch_scc1 L_ld")
    A(f"s_cmp_lt_u32 s2, {WMIN}"); A("s_cbranch_scc1 L_ld")
    body("L_ldx", N + UP)
    A("s_branch L_state")
    A("L_done:")
    A("s_waitcnt vmcnt(0)")
    A("s_barrier")
    if stamp: A("s_branch L_stamp")
    else: A("s_endpgm")

    A("L_cons:")
    C("---- consumer waves 1..4 (w = 0..3). K phase: wave w scores tile w of every stage (S^T = K Q^T, rows = keys);")
    C("V phase: wave w owns output columns 48w..48w+47 (O^T = V^T P^T) and every wave evaluates all probabilities.")
    Q, F, ACC, SC, PP = 8, 32, 56, 68, 84
    vM, vL, vMC = 92, 93, 94
    vKb, vVb, vSw, vSr, vA = 95, 96, 97, 98, 99
    T = 100
    vOut = 104
    A("s_sub_u32 s3, s3, 1")
    A("v_lshrrev_b32 v2, 4, v0")
    A("v_and_b32 v3, 15, v0")
    A("v_and_b32 v4, 3, v0")
    A("s_mul_i32 s10, s2, 1536")
    A("v_mul_u32_u24 v5, 384, v4")
    A("v_lshl_add_u32 v5, v2, 4, v5")
    A("s_waitcnt lgkmcnt(0)")
    A("s_add_u32 s12, s36, s10")
    A("s_addc_u32 s13, s37, 0")
    A("s_mov_b32 s14, 1536")
    A("s_mov_b32 s15, 0x20000")
    C("Q fragments: lane (g, j) holds Q[j&3][32*jj + 8g .. +7]")
    for jj in range(6):
        A(f"buffer_load_dwordx4 v[{Q+4*jj}:{Q+4*jj+3}], v5, s[12:15], 0 offen offset:{jj*64}")
    A("s_add_u32 s16, s38, s10")
    A("s_addc_u32 s17, s39, 0")
    A("s_mov_b32 s18, 1536")
    A("s_mov_b32 s19, 0x20000")
    A("s_mul_i32 s20, s3, 6144")
    A(f"v_mul_u32_u24 v{vKb}, 384, v3")
    A(f"v_lshl_add_u32 v{vKb}, v2, 4, v{vKb}")
    A(f"v_add_u32 v{vKb}, s20, v{vKb}")
    A("s_mul_i32 s20, s3, 96")
    A("v_lshrrev_b32 v6, 2, v0")
    A(f"v_mul_u32_u24 v{vVb}, 384, v6")
    A(f"v_lshl_add_u32 v{vVb}, v4, 3, v{vVb}")
    A(f"v_add_u32 v{vVb}, s20, v{vVb}")
    A(f"v_lshlrev_b32 v{vSr}, 6, v4")
    A(f"v_lshl_add_u32 v{vSr}, v2, 4, v{vSr}")
    A(f"v_add_u32 v{vSr}, {S_BASE}, v{vSr}")
    A("s_lshl_b32 s21, s3, 8")
    A(f"v_add_u32 v{vSw}, s21, v{vSr}")
    A(f"v_mul_u32_u24 v{vOut}, 384, v4")
    A(f"v_lshl_add_u32 v{vOut}, v2, 3, v{vOut}")
    A(f"v_add_u32 v{vOut}, s20, v{vOut}")
    A(f"v_mov_b32 v{vM}, 0xff800000")
    A(f"v_mov_b32 v{vL}, 0")
    for r in range(12): A(f"v_mov_b32 v{ACC+r}, 0")
    A("s_mov_b32 s27, 0")
    A("s_mov_b32 s22, 64")
    A("s_mov_b32 s24, 0x000f000f")
    A("s_mov_b32 s25, 0x000f000f")
    A(f"s_mov_b32 s26, {f32bits(c_exp2):#x}")
    A("s_waitcnt vmcnt(0)")
    C("K loop: scores of 16 keys x 4 queries per wave and stage -> LDS, running maximum per lane")
    A("L_kc:")
    A("s_barrier")
    A(f"v_add_u32 v{vA}, s27, v{vKb}")
    for jj in range(6):
        A(f"ds_read_b128 v[{F+4*jj}:{F+4*jj+3}], v{vA} offset:{jj*64}")
    A(f"s_add_u32 s27, s27, {STAGE}")
    A(f"s_cmp_ge_u32 s27, {RING}")
    A("s_cselect_b32 s27, 0, s27")
    for jj in range(6):
        A(f"s_waitcnt lgkmcnt({5-jj})")
        c = "0" if jj == 0 else f"v[{SC}:{SC+3}]"
        A(f"v_mfma_f32_16x16x32_bf16 v[{SC}:{SC+3}], v[{F+4*jj}:{F+4*jj+3}], v[{Q+4*jj}:{Q+4*jj+3}], {c}")
    A("s_sub_u32 s22, s22, 1")
    A("s_nop 7")
    A("s_mov_b64 exec, s[24:25]")
    A(f"ds_write_b128 v{vSw}, v[{SC}:{SC+3}]")
    A("s_mov_b64 exec, -1")
    A(f"v_max3_f32 v{vM}, v{SC}, v{SC+1}, v{vM}")
    A(f"v_max3_f32 v{vM}, v{SC+2}, v{SC+3}, v{vM}")
    A(f"v_add_u32 v{vSw}, 0x400, v{vSw}")
    A("s_cmp_lg_u32 s22, 0")
    A("s_cbranch_scc1 L_kc")
    def rowreduce(v, op):
        A(f"v_mov_b32 v{T}, v{v}")
        A("s_nop 1")
        A(f"v_permlane32_swap_b32 v{v}, v{T}")
        A("s_nop 1")
        A(f"{op} v{v}, v{v}, v{T}")
        A(f"v_mov_b32 v{T}, v{v}")
        A("s_nop 1")
        A(f"v_permlane16_swap_b32 v{v}, v{T}")
        A("s_nop 1")
        A(f"{op} v{v}, v{v}, v{T}")
    C("row maximum of this wave's keys -> LDS; after the next barrier every wave takes the maximum over all 4096 keys")
    rowreduce(vM, "v_max_f32")
    A(f"v_lshlrev_b32 v{T+1}, 4, v4")
    A(f"v_add_u32 v{T+1}, {MB}, v{T+1}")
    A("s_lshl_b32 s20, s3, 2")
    A(f"v_add_u32 v{T+2}, s20, v{T+1}")
    A(f"ds_write_b32 v{T+2}, v{vM}")
    def computeP():
        for r in range(16): A(f"v_fma_f32 v{SC+r}, v{SC+r}, s26, -v{vMC}")
        for r in range(16): A(f"v_exp_f32 v{SC+r}, v{SC+r}")
        A("s_nop 0")
        for r in range(8): A(f"v_cvt_pk_bf16_f32 v{PP+r}, v{SC+2*r}, v{SC+2*r+1}")
        for r in range(8): A(f"v_add_f32 v{SC+2*r}, v{SC+2*r}, v{SC+2*r+1}")
        for r in range(4): A(f"v_add_f32 v{SC+4*r}, v{SC+4*r}, v{SC+4*r+2}")
        A(f"v_add_f32 v{SC}, v{SC}, v{SC+4}")
        A(f"v_add_f32 v{SC+8}, v{SC+8}, v{SC+12}")
        A(f"v_add_f32 v{vL}, v{vL}, v{SC}")
        A(f"v_add_f32 v{vL}, v{vL}, v{SC+8}")
    def readS():
        for t in range(4):
            A(f"ds_read_b128 v[{SC+4*t}:{SC+4*t+3}], v{vSr} offset:{t*256}")
        A(f"v_add_u32 v{vSr}, 0x400, v{vSr}")
    A("s_mov_b32 s22, 64")
    A("s_waitcnt lgkmcnt(0)")
    A("s_barrier")
    A(f"ds_read_b128 v[{T}:{T+3}], v{T+1}")
    readS()
    A("s_waitcnt lgkmcnt(4)")
    A(f"v_max3_f32 v{vM}, v{T}, v{T+1}, v{T+2}")
    A(f"v_max_f32 v{vM}, v{vM}, v{T+3}")
    A(f"v_mul_f32 v{vMC}, s26, v{vM}")
    A("s_waitcnt lgkmcnt(0)")
    C("p = exp2((s - max) * scale * log2 e), row sums in f32, p packed to bf16")
    computeP()
    A("s_branch L_v1st")
    C("V loop: transposing LDS reads of V, 6 MFMAs, then the probabilities of the next stage")
    A("L_vc:")
    A("s_barrier")
    A("L_v1st:")
    A(f"v_add_u32 v{vA}, s27, v{vVb}")
    for ks in range(2):
        for n in range(3):
            for h in range(2):
                r = F + 4*(ks*3+n) + 2*h
                A(f"ds_read_b64_tr_b16 v[{r}:{r+1}], v{vA} offset:{(2*ks+h)*6144 + n*32}")
    A(f"s_add_u32 s27, s27, {STAGE}")
    A(f"s_cmp_ge_u32 s27, {RING}")
    A("s_cselect_b32 s27, 0, s27")
    A("s_sub_u32 s22, s22, 1")
    idx = 0
    for ks in range(2):
        for n in range(3):
            idx += 2
            A(f"s_waitcnt lgkmcnt({12-idx})")
            r = F + 4*(ks*3+n)
            A(f"v_mfma_f32_16x16x32_bf16 v[{ACC+4*n}:{ACC+4*n+3}], v[{r}:{r+3}], v[{PP+4*ks}:{PP+4*ks+3}], v[{ACC+4*n}:{ACC+4*n+3}]")
    A("s_cmp_eq_u32 s22, 0")
    A("s_cbranch_scc1 L_vdone")
    readS()
    A("s_waitcnt lgkmcnt(0)")
    computeP()
    A("s_branch L_vc")
    A("L_vdone:")
    C("normalise and store: lane (g, j<4) holds O[j][48w + 16n + 4g .. +3]")
    rowreduce(vL, "v_add_f32")
    A(f"v_rcp_f32 v{vL}, v{vL}")
    A("s_mov_b64 exec, s[24:25]")
    for r in range(12): A(f"v_mul_f32 v{ACC+r}, v{ACC+r}, v{vL}")
    for n in range(3):
        A(f"v_cvt_pk_bf16_f32 v{F+2*n}, v{ACC+4*n}, v{ACC+4*n+1}")
        A(f"v_cvt_pk_bf16_f32 v{F+2*n+1}, v{ACC+4*n+2}, v{ACC+4*n+3}")
    for n in range(3):
        A(f"buffer_store_dwordx2 v[{F+2*n}:{F+2*n+1}], v{vOut}, s[16:19], 0 offen offset:{n*32}")
    A("s_mov_b64 exec, -1")
    if stamp:
        A("L_stamp:")
        A("s_waitcnt vmcnt(0)")
        A("s_memrealtime s[62:63]")
        A("s_getreg_b32 s46, hwreg(HW_REG_XCC_ID)")
        A("s_mul_i32 s48, s2, 5")
        A("s_add_u32 s48, s48, s47")
        A("s_lshl_b32 s48, s48, 4")
        A("s_waitcnt lgkmcnt(0)")
        A("v_mov_b32 v2, s60"); A("v_mov_b32 v3, s62"); A("v_mov_b32 v4, s46"); A("v_mov_b32 v5, s46"); A("v_mov_b32 v6, s48")
        A("v_cmp_eq_u32 vcc, 0, v0"); A("s_and_saveexec_b64 s[50:51], vcc")
        A("global_store_dwordx4 v6, v[2:5], s[44:45]"); A("s_waitcnt vmcnt(0)")
    A("L_end:")
    A("s_endpgm")
    body_ = [x if (x.endswith(":") or x.startswith("    ;")) else "    " + x for x in L]
    head = f"""; Kernarg layout for this problem (48 bytes, ptrs only, base s[0:1]):
; @launch grid=(256,1,1) block=(320,1,1) lds={LDS_TOTAL}
.amdgcn_target "amdgcn-amd-amdhsa--gfx950"
.text
.globl {NAME}
.p2align 8
.type {NAME},@function
{NAME}:
"""
    tail = f"""
.section .rodata,"a"
.p2align 6
.amdhsa_kernel {NAME}
  .amdhsa_next_free_vgpr 112
  .amdhsa_next_free_sgpr 64
  .amdhsa_accum_offset 112
  .amdhsa_group_segment_fixed_size 0
  .amdhsa_kernarg_size 48
  .amdhsa_user_sgpr_count 2
  .amdhsa_user_sgpr_kernarg_segment_ptr 1
  .amdhsa_system_sgpr_workgroup_id_x 1
.end_amdhsa_kernel
"""
    return head + "\n".join(body_) + tail
if __name__ == "__main__":
    open("final_v7.s", "w").write(gen())
```

```python
import sys, json
import gen_final as gen_mha
from build import build
specs=[]; files=[]
for arg in sys.argv[1:]:
    name, _, kv = arg.partition(":")
    kw = {}
    for it in filter(None, kv.split(",")):
        k, v = it.split("=")
        if v in ("True","False"): kw[k] = (v == "True")
        else:
            try: kw[k] = int(v)
            except: kw[k] = v
    src = gen_mha.gen(**kw)
    open(name + ".s", "w").write(src)
    build(name + ".s")
    import re
    m = re.search(r"grid=\((\d+),1,1\) block=\((\d+),1,1\) lds=(\d+)", src)
    specs.append(f"{name}.co@standalone__mha_softmax__sampling_kernel:{m.group(1)}:{m.group(2)}:{m.group(3)}")
    files.append(f"exp/{name}.co")
open("specs.txt","w").write(" ".join(specs))
print(json.dumps(["exp/bench","exp/specs.txt","exp/run_bw.sh"]+files))
```

```python
import sys, math, struct

NAME = "standalone__mha_softmax__sampling_kernel"
KB = 4096 * 192 * 2
RING_STAGE = 24576
RING = 3 * RING_STAGE
S_BASE = RING
LDS_TOTAL = S_BASE + 4 * 16384

def f32bits(x):
    return struct.unpack("<I", struct.pack("<f", x))[0]

def gen(N=19, rot=21, order="BABABA", stamp=False, flags="nt", lprio=3, tl=False, dbg=False, N2=None, boost=0, nstage=3, prog=False, fb=False, dN=1, ths=(-13,13), PER=8, D=4, amode='v', fine=False, nload=1, c0=False, No=None, xf=False, trace=False, wgx=None, TH=10, TH2=None, XP=2, progpts=((2, 448), (3, 384), (5, 256), (6, 128))):
    if isinstance(progpts, str): progpts = tuple(zip((2,3,5,6), (int(x) for x in progpts.split('/'))))
    if isinstance(ths, str): ths = tuple(int(x) for x in ths.split('/'))
    global RING, S_BASE, LDS_TOTAL
    RING = nstage*RING_STAGE; S_BASE = RING; LDS_TOTAL = S_BASE + 4*16384 + 128
    CTRL = S_BASE + 4*16384
    if dbg: tl = True
    if True:
        pass
    L = []
    A = L.append
    def C(s): L.append("    ; " + s)
    def TS(k, wait=False):
        if tl:
            A(f"s_memrealtime s[{50+2*k}:{51+2*k}]")
            if wait: A("s_waitcnt lgkmcnt(0)")
    scale_l2e = (192 ** -0.5) * math.log2(math.e)

    A("s_cmp_ge_u32 s2, 256")
    A("s_cbranch_scc1 L_end")
    A("s_load_dwordx4 s[4:7], s[0:1], 8")
    A("s_load_dwordx2 s[36:37], s[0:1], 0")
    A("s_load_dwordx2 s[38:39], s[0:1], 24")
    if tl:
        for k in range(1, 7): A(f"s_mov_b64 s[{50+2*k}:{51+2*k}], 0")
        TS(0)
        A(f"s_load_dwordx2 s[44:45], s[0:1], {32 if dbg else 40}")
    if stamp:
        A("s_memrealtime s[40:41]")
        A("s_load_dwordx2 s[44:45], s[0:1], 40")
    if trace:
        A("s_load_dwordx2 s[44:45], s[0:1], 40")
    A("v_lshrrev_b32 v1, 6, v0")
    A("v_and_b32 v0, 63, v0")
    A(f"s_mul_i32 s9, s2, {KB}")
    A("v_readfirstlane_b32 s3, v1")
    A("s_nop 3")
    if nload == 1:
        A("s_cmp_lg_u32 s3, 0")
        A("s_cbranch_scc1 L_cons")
    else:
        A(f"s_cmp_ge_u32 s3, {nload}")
        A("s_cbranch_scc1 L_cons")

    if nload == 2:
        C("two loader waves: wave j streams tiles j, j+2, ...")
        A(f"s_setprio {lprio}")
        A("v_lshlrev_b32 v1, 4, v0")
        A(f"s_mul_i32 s21, s2, {rot}")
        A("s_add_u32 s21, s21, s3")
        A("s_and_b32 s21, s21, 255")
        A("s_mul_i32 s27, s3, 6144")
        A("s_mov_b32 s23, -2")
        def addr2(part):
            ins = ["s_and_b32 s30, s21, 63", "s_lshr_b32 s31, s21, 6", "s_mul_i32 s31, s31, 393216", "s_mul_i32 s35, s30, 3072",
                   "s_cmp_ge_u32 s30, 21", f"s_cselect_b32 s34, {176*384}, 0", "s_add_u32 s35, s35, s34",
                   "s_cmp_ge_u32 s30, 42", f"s_cselect_b32 s34, {176*384}, 0", "s_add_u32 s35, s35, s34",
                   f"s_mov_b32 s34, {168*384}", "s_cmp_eq_u32 s30, 63", f"s_cselect_b32 s35, {336*384}, s35", f"s_cselect_b32 s34, {344*384}, s34",
                   "s_add_u32 s35, s35, s31", "s_add_u32 s21, s21, 2", "s_and_b32 s21, s21, 255"]
            groups = [ins[0:4], ins[4:7], ins[7:10], ins[10:14], ins[14:17]]
            if part == "all":
                for x in ins: A(x)
            else:
                for x in groups[part]: A(x)
        addr2("all")
        A("s_mov_b32 s20, s35")
        A("v_add_u32 v2, s34, v1")
        A("s_waitcnt lgkmcnt(0)")
        A("s_add_u32 s12, s4, s9"); A("s_addc_u32 s13, s5, 0"); A(f"s_mov_b32 s14, {KB}"); A("s_mov_b32 s15, 0x20000")
        p = (N - 1) % 12
        bt, bl = p // 6, p % 6
        assert N <= 12
        A("L_ld:")
        cnt = {"A": 0, "B": 0}
        for t in range(6):
            s_ = order[t]; k = cnt[s_]; cnt[s_] += 1
            slot = (0 if s_ == "A" else 3) + k
            if slot*1024 - k*1024 == 0: A("s_mov_b32 m0, s27")
            else: A(f"s_add_u32 m0, s27, {slot*1024 - k*1024}")
            A(f"s_waitcnt vmcnt({N-1})")
            A(f"buffer_load_dwordx4 {'v1' if s_ == 'A' else 'v2'}, s[12:15], s20 offen offset:{k*1024} {flags} lds")
            if t == bl:
                A("s_and_b32 s28, s23, 0x80000001")
                A(f"s_cmp_lg_u32 s28, {bt}")
                A("s_cbranch_scc1 L_ld_nb")
                A("s_barrier")
                A("L_ld_nb:")
            if t < 5: addr2(t)
        A("s_mov_b32 s20, s35")
        A("v_add_u32 v2, s34, v1")
        A("s_add_u32 s27, s27, 12288")
        A(f"s_cmp_ge_u32 s27, {RING}")
        A(f"s_cbranch_scc0 L_ld_nw")
        A(f"s_sub_u32 s27, s27, {RING}")
        A("L_ld_nw:")
        A("s_add_u32 s23, s23, 1")
        A("s_cmp_lg_u32 s23, 126")
        A("s_cbranch_scc1 L_ld_nsw")
        A("s_add_u32 s12, s6, s9"); A("s_addc_u32 s13, s7, 0")
        A("L_ld_nsw:")
        A("s_cmp_lg_u32 s23, 254")
        A("s_cbranch_scc1 L_ld")
        A("s_waitcnt vmcnt(0)")
        TS(4)
        A("s_barrier")
        if stamp or tl: A("s_branch L_stamp")
        else: A("s_endpgm")
    _mark = len(L)
    def _single():
        pass
    C("loader wave: streams K then V through the LDS ring (LDS-DMA), window of N loads in flight")
    A(f"s_setprio {lprio}")
    A("v_lshlrev_b32 v1, 4, v0")
    A(f"s_mul_i32 s21, s2, {rot}")
    if c0:
        A("s_add_u32 s21, s21, 4")
        A("s_and_b32 s21, s21, 255")
        A("s_movk_i32 s33, 252")
        A(f"s_mov_b32 s27, {RING_STAGE}")
        A("s_mov_b32 s23, 0")
    else:
        A("s_and_b32 s21, s21, 255")
        A("s_movk_i32 s33, 256")
        A("s_mov_b32 s27, 0")
        A("s_mov_b32 s23, -4")
    def newrun():
        A("s_and_b32 s30, s21, 63")
        A("s_lshr_b32 s31, s21, 6")
        A("s_mul_i32 s31, s31, 393216")
        A("s_mul_i32 s20, s30, 3072")
        A("s_movk_i32 s32, 21")
        A("s_cmp_ge_u32 s30, 21")
        A(f"s_cselect_b32 s34, {176*384}, 0")
        A("s_cselect_b32 s32, 42, s32")
        A("s_add_u32 s20, s20, s34")
        A("s_cmp_ge_u32 s30, 42")
        A(f"s_cselect_b32 s34, {176*384}, 0")
        A("s_cselect_b32 s32, 63, s32")
        A("s_add_u32 s20, s20, s34")
        A(f"s_mov_b32 s34, {168*384}")
        A("s_cmp_eq_u32 s30, 63")
        A(f"s_cselect_b32 s20, {336*384}, s20")
        A(f"s_cselect_b32 s34, {344*384}, s34")
        A("s_cselect_b32 s32, 64, s32")
        A("s_add_u32 s20, s20, s31")
        A("s_sub_u32 s32, s32, s30")
        A("s_min_u32 s32, s32, s33")
        A("v_add_u32 v2, s34, v1")
        A("s_sub_u32 s33, s33, s32")
        A("s_add_u32 s21, s21, s32")
        A("s_and_b32 s21, s21, 255")
        A("s_sub_u32 s29, 0, s32")
    newrun()
    A("s_waitcnt lgkmcnt(0)")
    A("s_add_u32 s12, s4, s9")
    A("s_addc_u32 s13, s5, 0")
    A(f"s_mov_b32 s14, {KB}")
    A("s_mov_b32 s15, 0x20000")
    TS(1)
    def tile_loop(label, NN, end_tile):
        p = (NN - 1) % 24
        bt, bl = p // 6, p % 6
        A(f"{label}:")
        cnt = {"A": 0, "B": 0}
        for t in range(6):
            s_ = order[t]; k = cnt[s_]; cnt[s_] += 1
            slot = (0 if s_ == "A" else 3) + k
            if slot*1024 - k*1024 == 0: A("s_mov_b32 m0, s27")
            else: A(f"s_add_u32 m0, s27, {slot*1024 - k*1024}")
            A(f"s_waitcnt vmcnt({NN-1})")
            A(f"buffer_load_dwordx4 {'v1' if s_ == 'A' else 'v2'}, s[12:15], s20 offen offset:{k*1024} {flags} lds")
            if t == bl:
                A("s_and_b32 s28, s23, 0x80000003")
                A(f"s_cmp_lg_u32 s28, {bt}")
                A(f"s_cbranch_scc1 {label}_nb")
                A("s_barrier")
                A(f"{label}_nb:")
            if t == (bl + 1) % 5 + (1 if (bl + 1) % 5 >= 5 else 0) and False: pass
            if t == 2:
                A("s_add_u32 s22, s27, 6144")
                A(f"s_cmp_ge_u32 s22, {RING}")
                A("s_cselect_b32 s22, 0, s22")
            if t == 4 and trace:
                A("s_memrealtime s[50:51]")
                A("s_add_u32 s52, s23, 4")
                A("s_lshl_b32 s53, s2, 9"); A("s_add_u32 s52, s52, s53"); A("s_lshl_b32 s52, s52, 3")
                A("s_waitcnt lgkmcnt(0)")
                A("v_mov_b32 v8, s50"); A("v_mov_b32 v9, s20"); A("v_mov_b32 v10, s52")
                A("s_mov_b64 exec, 1"); A("global_store_dwordx2 v10, v[8:9], s[44:45]"); A("s_mov_b64 exec, -1")
            if t == 3 and tl and prog:
                for k2, left in (progpts):
                    A(f"s_cmp_eq_u32 s23, {512 - 4 - left}"); A(f"s_cbranch_scc0 {label}_ts{k2}"); TS(k2); A(f"{label}_ts{k2}:")
        A("s_add_u32 s20, s20, 3072")
        A("s_mov_b32 s27, s22")
        A("s_add_u32 s29, s29, 1")
        A(f"s_cbranch_scc1 {label}_rare")
        A(f"{label}_ret:")
        A("s_add_u32 s23, s23, 1")
        A(f"s_cmp_lg_u32 s23, {end_tile - 4}")
        A(f"s_cbranch_scc1 {label}")
        return label
    def rare(label):
        A(f"{label}_rare:")
        A("s_cmp_lg_u32 s33, 0")
        A(f"s_cbranch_scc1 {label}_r2")
        A("s_add_u32 s12, s6, s9")
        A("s_addc_u32 s13, s7, 0")
        A("s_movk_i32 s33, 256")
        A(f"{label}_r2:")
        newrun()
        A(f"s_branch {label}_ret")
    assert N <= 24
    loops = []
    if xf:
        levels = [N-1, N, N+1] if TH2 is None else [N-2, N-1, N, N+1, N+2]
        nl = len(levels); mid = nl//2
        assert max(levels) <= 24
        A("s_load_dwordx2 s[42:43], s[0:1], 32")
        A("s_getreg_b32 s28, hwreg(HW_REG_XCC_ID, 0, 3)")
        A("s_lshl_b32 s28, s28, 5")
        A("s_bfe_u32 s35, s2, 0x50003")
        A("v_mov_b32 v3, s35")
        A(f"s_mov_b32 s37, {mid}")
        A("s_mov_b32 s36, 0")
        A("s_waitcnt lgkmcnt(0)")
        A("s_add_u32 s42, s42, s28")
        A("s_addc_u32 s43, s43, 0")
        A("L_stage:")
        A("v_mov_b32 v4, s36")
        A("s_mov_b64 exec, 1")
        A("global_store_byte v3, v4, s[42:43]")
        A("s_mov_b64 exec, -1")
        A(f"s_and_b32 s28, s36, {XP-1}")
        A("s_cmp_lg_u32 s28, 0"); A("s_cbranch_scc1 L_x1")
        A("s_load_dwordx8 s[48:55], s[42:43], 0x0 glc")
        A("s_mov_b32 s38, s36")
        A("s_branch L_x2")
        A("L_x1:")
        A("s_cmp_lg_u32 s28, 1"); A("s_cbranch_scc1 L_x2")
        A("s_cmp_lt_u32 s36, 4"); A("s_cbranch_scc1 L_x2")
        A("s_waitcnt lgkmcnt(0)")
        A("v_sad_u8 v5, s48, 0, 0")
        for j in range(1, 8): A(f"v_sad_u8 v5, s{48+j}, 0, v5")
        A("s_lshl_b32 s39, s38, 5")
        A("s_sub_u32 s39, s39, 16")
        A("v_readfirstlane_b32 s28, v5")
        A("s_nop 1")
        A("s_sub_i32 s28, s28, s39")
        ths = [-TH, TH+1] if TH2 is None else [-TH2, -TH, TH+1, TH2+1]
        A("s_mov_b32 s37, 0")
        for t in ths:
            A(f"s_cmp_ge_i32 s28, {t}"); A("s_addc_u32 s37, s37, 0")
        A("s_abs_i32 s28, s28")
        A("s_cmp_gt_u32 s28, 160"); A(f"s_cselect_b32 s37, {mid}, s37")
        A("L_x2:")
        A("s_add_u32 s36, s36, 1")
        orderl = [mid] + [i for i in range(nl) if i != mid]
        for li in orderl[1:]:
            A(f"s_cmp_eq_u32 s37, {li}"); A(f"s_cbranch_scc1 L_v{li}")
        for idx, li in enumerate(orderl):
            NN = levels[li]
            p = (NN - 1) % 24
            bt, bl = p // 6, p % 6
            label = f"L_v{li}"
            A(f"{label}:")
            cnt = {"A": 0, "B": 0}
            for t in range(6):
                s_ = order[t]; k = cnt[s_]; cnt[s_] += 1
                slot = (0 if s_ == "A" else 3) + k
                if slot*1024 - k*1024 == 0: A("s_mov_b32 m0, s27")
                else: A(f"s_add_u32 m0, s27, {slot*1024 - k*1024}")
                A(f"s_waitcnt vmcnt({NN-1})")
                A(f"buffer_load_dwordx4 {'v1' if s_ == 'A' else 'v2'}, s[12:15], s20 offen offset:{k*1024} {flags} lds")
                if t == bl:
                    A("s_and_b32 s28, s23, 0x80000003")
                    A(f"s_cmp_lg_u32 s28, {bt}")
                    A(f"s_cbranch_scc1 {label}_nb")
                    A("s_barrier")
                    A(f"{label}_nb:")
                if t == 2:
                    A("s_add_u32 s22, s27, 6144")
                    A(f"s_cmp_ge_u32 s22, {RING}")
                    A("s_cselect_b32 s22, 0, s22")
            A("s_add_u32 s20, s20, 3072")
            A("s_mov_b32 s27, s22")
            A("s_add_u32 s29, s29, 1")
            A(f"s_cbranch_scc1 {label}_rare")
            A(f"{label}_ret:")
            A("s_add_u32 s23, s23, 1")
            A("s_and_b32 s28, s23, 3")
            A(f"s_cbranch_scc1 {label}")
            if idx != len(orderl)-1: A("s_branch L_next")
        A("L_next:")
        A("s_cmp_lg_u32 s23, 508")
        A("s_cbranch_scc1 L_stage")
        A("s_waitcnt vmcnt(0)")
        TS(4)
        A("s_barrier")
        if stamp or tl: A("s_branch L_stamp")
        else: A("s_endpgm")
        for li in orderl:
            A(f"L_v{li}_rare:")
            A("s_call_b64 s[68:69], L_rare")
            A(f"s_branch L_v{li}_ret")
        A("L_rare:")
        A("s_cmp_lg_u32 s33, 0")
        A("s_cbranch_scc1 L_rare2")
        A("s_add_u32 s12, s6, s9")
        A("s_addc_u32 s13, s7, 0")
        A("s_movk_i32 s33, 256")
        A("L_rare2:")
        newrun()
        A("s_setpc_b64 s[68:69]")
        _xfdone = True
    elif No is not None and No != N:
        if wgx is None:
            A("s_getreg_b32 s28, hwreg(HW_REG_XCC_ID, 0, 1)")
            A("s_cmp_eq_u32 s28, 1")
        else:
            A(f"s_cmp_ge_u32 s2, {wgx}")
        A("s_cbranch_scc1 L_ldo")
        loops.append(tile_loop("L_ld", N, 512))
        A("s_branch L_ldx")
        loops.append(tile_loop("L_ldo", No, 512))
        A("L_ldx:")
        A("s_waitcnt vmcnt(0)")
        TS(4)
        A("s_barrier")
    elif N2 is None or boost == 0:
        loops.append(tile_loop("L_ld", N, 512))
        A("s_waitcnt vmcnt(0)")
        TS(4)
        A("s_barrier")
    else:
        loops.append(tile_loop("L_ld", N, 512 - 4*boost))
        if N2 <= 24:
            loops.append(tile_loop("L_ld2", N2, 512))
            A("s_waitcnt vmcnt(0)")
            TS(4)
            A("s_barrier")
        else:
            raise NotImplementedError
    if not xf:
        if stamp or tl:
            A("s_branch L_stamp")
        else:
            A("s_endpgm")
    for l in loops: rare(l)

    if nload != 1: del L[_mark:]
    A("L_cons:")
    C("consumer waves 1..4 -> w = 0..3. K phase: wave w scores tile w of each stage; V phase: wave w owns d columns 48w..48w+47")
    Q = 8
    F = 32
    ACC = 56
    SC = 68
    PP = 84
    vM, vL, vMC = 92, 93, 94
    vKb, vVb, vSw, vSr, vA = 95, 96, 97, 98, 99
    T = 100
    vOut = 104
    MB = CTRL + (0 if not fb else 16)
    A(f"s_sub_u32 s3, s3, {nload}")
    A("v_lshrrev_b32 v2, 4, v0")
    A("v_and_b32 v3, 15, v0")
    A("v_and_b32 v4, 3, v0")
    if c0:
        A(f"s_mul_i32 s21, s2, {rot}")
        A("s_add_u32 s21, s21, s3")
        A("s_and_b32 s30, s21, 63")
        A("s_bfe_u32 s31, s21, 0x20006")
        A("s_mul_i32 s31, s31, 393216")
        A("s_mul_i32 s20, s30, 3072")
        A("s_cmp_ge_u32 s30, 21")
        A(f"s_cselect_b32 s34, {176*384}, 0")
        A("s_add_u32 s20, s20, s34")
        A("s_cmp_ge_u32 s30, 42")
        A(f"s_cselect_b32 s34, {176*384}, 0")
        A("s_add_u32 s20, s20, s34")
        A(f"s_mov_b32 s34, {168*384}")
        A("s_cmp_eq_u32 s30, 63")
        A(f"s_cselect_b32 s20, {336*384}, s20")
        A(f"s_cselect_b32 s34, {344*384}, s34")
        A("s_add_u32 s20, s20, s31")
        A("v_lshlrev_b32 v6, 4, v0")
        A("v_add_u32 v7, s34, v6")
        A("s_mul_i32 s27, s3, 6144")
    A("s_mul_i32 s10, s2, 1536")
    A("v_mul_u32_u24 v5, 384, v4")
    A("v_lshl_add_u32 v5, v2, 4, v5")
    A("s_waitcnt lgkmcnt(0)")
    if c0:
        A("s_add_u32 s64, s4, s9"); A("s_addc_u32 s65, s5, 0"); A(f"s_mov_b32 s66, {KB}"); A("s_mov_b32 s67, 0x20000")
        cnt = {"A": 0, "B": 0}
        for t in range(6):
            s_ = order[t]; k = cnt[s_]; cnt[s_] += 1
            slot = (0 if s_ == "A" else 3) + k
            A(f"s_add_u32 m0, s27, {slot*1024 - k*1024}")
            A("s_nop 0")
            A(f"buffer_load_dwordx4 {'v6' if s_ == 'A' else 'v7'}, s[64:67], s20 offen offset:{k*1024} {flags} lds")
    A("s_add_u32 s12, s36, s10")
    A("s_addc_u32 s13, s37, 0")
    A("s_mov_b32 s14, 1536")
    A("s_mov_b32 s15, 0x20000")
    for jj in range(6):
        A(f"buffer_load_dwordx4 v[{Q+4*jj}:{Q+4*jj+3}], v5, s[12:15], 0 offen offset:{jj*64}")
    A("s_add_u32 s16, s38, s10")
    A("s_addc_u32 s17, s39, 0")
    A("s_mov_b32 s18, 1536")
    A("s_mov_b32 s19, 0x20000")
    A("s_mul_i32 s20, s3, 6144")
    A(f"v_mul_u32_u24 v{vKb}, 384, v3")
    A(f"v_lshl_add_u32 v{vKb}, v2, 4, v{vKb}")
    A(f"v_add_u32 v{vKb}, s20, v{vKb}")
    A("s_mul_i32 s20, s3, 96")
    A("v_lshrrev_b32 v6, 2, v0")
    A(f"v_mul_u32_u24 v{vVb}, 384, v6")
    A(f"v_lshl_add_u32 v{vVb}, v4, 3, v{vVb}")
    A(f"v_add_u32 v{vVb}, s20, v{vVb}")
    A(f"v_lshlrev_b32 v{vSr}, 6, v4")
    A(f"v_lshl_add_u32 v{vSr}, v2, 4, v{vSr}")
    A(f"v_add_u32 v{vSr}, {S_BASE}, v{vSr}")
    A("s_lshl_b32 s21, s3, 8")
    A(f"v_add_u32 v{vSw}, s21, v{vSr}")
    A("s_mul_i32 s20, s3, 96")
    A(f"v_mul_u32_u24 v{vOut}, 384, v4")
    A(f"v_lshl_add_u32 v{vOut}, v2, 3, v{vOut}")
    A(f"v_add_u32 v{vOut}, s20, v{vOut}")
    A(f"v_mov_b32 v{vM}, 0xff800000")
    A(f"v_mov_b32 v{vL}, 0")
    for r in range(12): A(f"v_mov_b32 v{ACC+r}, 0")
    A("s_mov_b32 s27, 0")
    A("s_mov_b32 s22, 64")
    A("s_mov_b32 s24, 0x000f000f")
    A("s_mov_b32 s25, 0x000f000f")
    A(f"s_mov_b32 s26, {f32bits(scale_l2e):#x}")
    if fb:
        A("s_load_dwordx2 s[42:43], s[0:1], 32")
        A("s_mov_b32 s29, 0")
        A("s_mov_b32 s32, 0")
        A(f"s_lshr_b32 s33, s2, 3"); A(f"s_and_b32 s33, s33, {PER-1}")
        A("v_mov_b32 v120, 0"); A("v_mov_b32 v121, 0"); A("v_mov_b32 v122, 1"); A(f"v_mov_b32 v123, {CTRL}")
        A("s_waitcnt lgkmcnt(0)")
    def ctrl(label):
        pass
    A("s_waitcnt vmcnt(0)")
    TS(1, True)
    A("L_kc:")
    A("s_barrier")
    A(f"v_add_u32 v{vA}, s27, v{vKb}")
    for jj in range(6):
        A(f"ds_read_b128 v[{F+4*jj}:{F+4*jj+3}], v{vA} offset:{jj*64}")
    A(f"s_add_u32 s27, s27, {RING_STAGE}")
    A(f"s_cmp_ge_u32 s27, {RING}")
    A("s_cselect_b32 s27, 0, s27")
    for jj in range(6):
        A(f"s_waitcnt lgkmcnt({5-jj})")
        c = "0" if jj == 0 else f"v[{SC}:{SC+3}]"
        A(f"v_mfma_f32_16x16x32_bf16 v[{SC}:{SC+3}], v[{F+4*jj}:{F+4*jj+3}], v[{Q+4*jj}:{Q+4*jj+3}], {c}")
    A("s_sub_u32 s22, s22, 1")
    A("s_mov_b64 exec, s[24:25]")
    A("s_nop 7")
    A(f"ds_write_b128 v{vSw}, v[{SC}:{SC+3}]")
    A("s_mov_b64 exec, -1")
    A(f"v_max3_f32 v{vM}, v{SC}, v{SC+1}, v{vM}")
    A(f"v_max3_f32 v{vM}, v{SC+2}, v{SC+3}, v{vM}")
    A(f"v_add_u32 v{vSw}, 0x400, v{vSw}")
    A("s_cmp_lg_u32 s22, 0")
    A("s_cbranch_scc1 L_kc")
    def rowreduce(v, op):
        A(f"v_mov_b32 v{T}, v{v}")
        A("s_nop 1")
        A(f"v_permlane32_swap_b32 v{v}, v{T}")
        A("s_nop 1")
        A(f"{op} v{v}, v{v}, v{T}")
        A(f"v_mov_b32 v{T}, v{v}")
        A("s_nop 1")
        A(f"v_permlane16_swap_b32 v{v}, v{T}")
        A("s_nop 1")
        A(f"{op} v{v}, v{v}, v{T}")
    TS(2)
    rowreduce(vM, "v_max_f32")
    A(f"v_lshlrev_b32 v{T+1}, 4, v4")
    A(f"v_add_u32 v{T+1}, {MB}, v{T+1}")
    A("s_lshl_b32 s20, s3, 2")
    A(f"v_add_u32 v{T+2}, s20, v{T+1}")
    A(f"ds_write_b32 v{T+2}, v{vM}")
    def computeP():
        for r in range(16): A(f"v_fma_f32 v{SC+r}, v{SC+r}, s26, -v{vMC}")
        for r in range(16): A(f"v_exp_f32 v{SC+r}, v{SC+r}")
        A("s_nop 0")
        for r in range(8): A(f"v_cvt_pk_bf16_f32 v{PP+r}, v{SC+2*r}, v{SC+2*r+1}")
        for r in range(8): A(f"v_add_f32 v{SC+2*r}, v{SC+2*r}, v{SC+2*r+1}")
        for r in range(4): A(f"v_add_f32 v{SC+4*r}, v{SC+4*r}, v{SC+4*r+2}")
        A(f"v_add_f32 v{SC}, v{SC}, v{SC+4}")
        A(f"v_add_f32 v{SC+8}, v{SC+8}, v{SC+12}")
        A(f"v_add_f32 v{vL}, v{vL}, v{SC}")
        A(f"v_add_f32 v{vL}, v{vL}, v{SC+8}")
    def readS():
        for t in range(4):
            A(f"ds_read_b128 v[{SC+4*t}:{SC+4*t+3}], v{vSr} offset:{t*256}")
        A(f"v_add_u32 v{vSr}, 0x400, v{vSr}")
    A("s_mov_b32 s22, 64")
    A("s_waitcnt lgkmcnt(0)")
    A("s_barrier")
    A(f"ds_read_b128 v[{T}:{T+3}], v{T+1}")
    readS()
    A("s_waitcnt lgkmcnt(4)")
    A(f"v_max3_f32 v{vM}, v{T}, v{T+1}, v{T+2}")
    A(f"v_max_f32 v{vM}, v{vM}, v{T+3}")
    A(f"v_mul_f32 v{vMC}, s26, v{vM}")
    A("s_waitcnt lgkmcnt(0)")
    computeP()
    A("s_branch L_v1st")
    A("L_vc:")
    A("s_barrier")
    A("L_v1st:")
    A(f"v_add_u32 v{vA}, s27, v{vVb}")
    for ks in range(2):
        for n in range(3):
            for h in range(2):
                r = F + 4*(ks*3+n) + 2*h
                A(f"ds_read_b64_tr_b16 v[{r}:{r+1}], v{vA} offset:{(2*ks+h)*6144 + n*32}")
    A(f"s_add_u32 s27, s27, {RING_STAGE}")
    A(f"s_cmp_ge_u32 s27, {RING}")
    A("s_cselect_b32 s27, 0, s27")
    A("s_sub_u32 s22, s22, 1")
    idx = 0
    for ks in range(2):
        for n in range(3):
            idx += 2
            A(f"s_waitcnt lgkmcnt({12-idx})")
            r = F + 4*(ks*3+n)
            A(f"v_mfma_f32_16x16x32_bf16 v[{ACC+4*n}:{ACC+4*n+3}], v[{r}:{r+3}], v[{PP+4*ks}:{PP+4*ks+3}], v[{ACC+4*n}:{ACC+4*n+3}]")
    A("s_cmp_eq_u32 s22, 0")
    A("s_cbranch_scc1 L_vdone")
    readS()
    A("s_waitcnt lgkmcnt(0)")
    computeP()
    A("s_branch L_vc")
    A("L_vdone:")
    TS(3)
    rowreduce(vL, "v_add_f32")
    A(f"v_rcp_f32 v{vL}, v{vL}")
    A("s_mov_b64 exec, s[24:25]")
    for r in range(12): A(f"v_mul_f32 v{ACC+r}, v{ACC+r}, v{vL}")
    for n in range(3):
        A(f"v_cvt_pk_bf16_f32 v{F+2*n}, v{ACC+4*n}, v{ACC+4*n+1}")
        A(f"v_cvt_pk_bf16_f32 v{F+2*n+1}, v{ACC+4*n+2}, v{ACC+4*n+3}")
    for n in range(3):
        A(f"buffer_store_dwordx2 v[{F+2*n}:{F+2*n+1}], v{vOut}, s[16:19], 0 offen offset:{n*32}")
    A("s_mov_b64 exec, -1")
    TS(4)
    A("L_fin:")
    if stamp:
        A("L_stamp:")
        A("s_waitcnt vmcnt(0)")
        A("s_memrealtime s[42:43]")
        A("s_getreg_b32 s46, hwreg(HW_REG_XCC_ID)")
        A("v_readfirstlane_b32 s3, v1") if False else None
        A(f"s_mul_i32 s48, s2, {4+nload}")
        A("s_add_u32 s48, s48, s47")
        A("s_lshl_b32 s48, s48, 4")
        A("s_waitcnt lgkmcnt(0)")
        A("v_mov_b32 v2, s40"); A("v_mov_b32 v3, s42"); A("v_mov_b32 v4, s46"); A("v_mov_b32 v5, s46"); A("v_mov_b32 v6, s48")
        A("v_cmp_eq_u32 vcc, 0, v0"); A("s_and_saveexec_b64 s[50:51], vcc")
        A("global_store_dwordx4 v6, v[2:5], s[44:45]"); A("s_waitcnt vmcnt(0)")
    if tl:
        A("L_stamp:")
        A("s_waitcnt vmcnt(0)")
        if not prog: TS(5)
        A("s_getreg_b32 s46, hwreg(HW_REG_XCC_ID)")
        A("s_getreg_b32 s45, hwreg(HW_REG_HW_ID)") if False else None
        A("s_getreg_b32 s49, hwreg(4, 8, 8)")
        A("s_lshl_b32 s46, s46, 8")
        A("s_or_b32 s46, s46, s49")
        A(f"s_mul_i32 s48, s2, {4+nload}")
        A("s_add_u32 s48, s48, s47")
        A("s_lshl_b32 s48, s48, 5")
        A("s_waitcnt lgkmcnt(0)")
        if dbg:
            A("v_cmp_eq_u32 vcc, 0, v0"); A("s_and_saveexec_b64 s[48:49], vcc")
            A("v_mov_b32 v6, 0")
            A("s_cmp_lg_u32 s47, 0"); A("s_cbranch_scc1 L_dbgc")
            A("s_not_b32 s46, s50"); A("v_mov_b32 v8, s46"); A("global_atomic_umax v6, v8, s[44:45]")
            A("v_mov_b32 v9, s52"); A("global_atomic_umax v6, v9, s[44:45] offset:4")
            A("v_mov_b32 v10, s54"); A("global_atomic_umax v6, v10, s[44:45] offset:8")
            A("v_mov_b32 v11, s58"); A("global_atomic_umax v6, v11, s[44:45] offset:12")
            A("s_sub_u32 s46, s58, s50"); A("v_mov_b32 v12, s46"); A("global_atomic_add v6, v12, s[44:45] offset:32")
            A("s_sub_u32 s46, s54, s50"); A("v_mov_b32 v13, s46"); A("global_atomic_add v6, v13, s[44:45] offset:36")
            A("s_waitcnt vmcnt(0)"); A("s_endpgm")
            A("L_dbgc:")
            A("v_mov_b32 v9, s52"); A("global_atomic_umax v6, v9, s[44:45] offset:16")
            A("v_mov_b32 v10, s54"); A("global_atomic_umax v6, v10, s[44:45] offset:20")
            A("v_mov_b32 v11, s60"); A("global_atomic_umax v6, v11, s[44:45] offset:24")
            A("s_waitcnt vmcnt(0)"); A("s_endpgm")
        for k in range(7): A(f"v_mov_b32 v{8+k}, s{50+2*k}")
        A("v_mov_b32 v15, s46"); A("v_mov_b32 v6, s48")
        A("v_cmp_eq_u32 vcc, 0, v0"); A("s_and_saveexec_b64 s[48:49], vcc")
        A("global_store_dwordx4 v6, v[8:11], s[44:45]"); A("global_store_dwordx4 v6, v[12:15], s[44:45] offset:16"); A("s_waitcnt vmcnt(0)")
    A("L_end:")
    A("s_endpgm")

    body = []
    for x in L:
        if x is None: continue
        body.append(x if (x.endswith(":") or x.startswith("    ;")) else "    " + x)
    if stamp or tl:
        i = next(k for k, x in enumerate(body) if "v_readfirstlane_b32 s3, v1" in x)
        body.insert(i + 2, "    s_mov_b32 s47, s3")
    head = f"""; Kernarg layout for this problem (48 bytes, ptrs only, base s[0:1]):
; @launch grid=(256,1,1) block=({256+64*nload},1,1) lds={LDS_TOTAL}
.amdgcn_target "amdgcn-amd-amdhsa--gfx950"
.text
.globl {NAME}
.p2align 8
.type {NAME},@function
{NAME}:
"""
    tail = f"""
.section .rodata,"a"
.p2align 6
.amdhsa_kernel {NAME}
  .amdhsa_next_free_vgpr 128
  .amdhsa_next_free_sgpr 72
  .amdhsa_accum_offset 128
  .amdhsa_group_segment_fixed_size 0
  .amdhsa_kernarg_size 48
  .amdhsa_user_sgpr_count 2
  .amdhsa_user_sgpr_kernarg_segment_ptr 1
  .amdhsa_system_sgpr_workgroup_id_x 1
.end_amdhsa_kernel
"""
    return head + "\n".join(body) + tail

if __name__ == "__main__":
    import argparse
    ap = argparse.ArgumentParser()
    ap.add_argument("-o", default="mha.s")
    ap.add_argument("-N", type=int, default=19)
    ap.add_argument("--rot", type=int, default=21)
    ap.add_argument("--order", default="BABABA")
    ap.add_argument("--stamp", action="store_true")
    ap.add_argument("--tl", action="store_true")
    ap.add_argument("--dbg", action="store_true")
    ap.add_argument("--N2", type=int, default=None)
    ap.add_argument("--boost", type=int, default=0)
    ap.add_argument("--nstage", type=int, default=3)
    a = ap.parse_args()
    open(a.o, "w").write(gen(N=a.N, rot=a.rot, order=a.order, stamp=a.stamp, tl=a.tl, dbg=a.dbg, N2=a.N2, boost=a.boost, nstage=a.nstage))
```

```python
import sys, json
import gen_mha
from build import build
specs=[]; files=[]
for arg in sys.argv[1:]:
    name, _, kv = arg.partition(":")
    kw = {}
    for it in filter(None, kv.split(",")):
        k, v = it.split("=")
        if v in ("True","False"): kw[k] = (v == "True")
        else:
            try: kw[k] = int(v)
            except: kw[k] = v
    src = gen_mha.gen(**kw)
    open(name + ".s", "w").write(src)
    build(name + ".s")
    import re
    m = re.search(r"grid=\((\d+),1,1\) block=\((\d+),1,1\) lds=(\d+)", src)
    specs.append(f"{name}.co@standalone__mha_softmax__sampling_kernel:{m.group(1)}:{m.group(2)}:{m.group(3)}")
    files.append(f"exp/{name}.co")
open("specs.txt","w").write(" ".join(specs))
print(json.dumps(["exp/bench","exp/specs.txt","exp/run_bw.sh"]+files))
```
